```python
import torch

def _softmax(x, axis=-1):
    return torch.softmax(x, dim=axis)
def _gelu(x):
    return torch.nn.functional.gelu(x, approximate="tanh")
def _silu(x):
    return torch.nn.functional.silu(x)
def _sigmoid(x):
    return torch.sigmoid(x)
def _layernorm(x, axis=-1, eps=1e-5):
    m = x.mean(dim=axis, keepdim=True)
    v = x.var(dim=axis, keepdim=True, unbiased=False)
    return (x - m) / torch.sqrt(v + eps)
def _scatter_add(tgt, idx, src, axis=0):
    return tgt.clone().index_add_(axis, idx, src)
def _segment_sum(src, seg, n):
    out = torch.zeros((n,) + src.shape[1:], dtype=src.dtype)
    return out.index_add_(0, seg, src)
def _pad(x, pw):
    flat = tuple(v for pair in reversed(pw) for v in pair)
    return torch.nn.functional.pad(x, flat)

kernel_name = 'standalone__gqa_softmax__prompt'

def setup_inputs():

    _w = (lambda a: (lambda t: t.to(torch.bfloat16) if t.is_floating_point() else t)(torch.as_tensor(a)))
    B, Hq, Hkv, Sq, Sk, D = 1, 32, 32, 2048, 2048, 128
    return {
        "q": _w((lambda *s: torch.randn(*s, dtype=torch.bfloat16) * 0.8)(B, Hq, Sq, D)),
        "k": _w((lambda *s: torch.randn(*s, dtype=torch.bfloat16) * 0.8)(B, Hkv, Sk, D)),
        "v": _w((lambda *s: torch.randn(*s, dtype=torch.bfloat16) * 0.05)(B, Hkv, Sk, D)),
    }

def reference(q, k, v):
    B, Hq, Sq, D = q.shape
    Hkv = k.shape[1]
    rep = Hq // Hkv
    k = (lambda x, n, axis: torch.repeat_interleave(x, n, dim=axis))(k, rep, axis=1)
    v = (lambda x, n, axis: torch.repeat_interleave(x, n, dim=axis))(v, rep, axis=1)
    scale = D ** -0.5
    scores = torch.einsum("bhqd,bhkd->bhqk", q, k) * scale
    p = _softmax(scores, axis=-1)
    return torch.einsum("bhqk,bhkd->bhqd", p, v)
```

```python
HEADER = """; Kernarg layout for this problem (48 bytes, ptrs only, base s[0:1]):
; @launch grid=({grid},1,1) block=({block},1,1) lds={lds}
.amdgcn_target "amdgcn-amd-amdhsa--gfx950"
.text
.globl standalone__gqa_softmax__prompt_kernel
.p2align 8
.type standalone__gqa_softmax__prompt_kernel,@function
standalone__gqa_softmax__prompt_kernel:
"""
FOOTER = """s_endpgm
.section .rodata,"a"
.p2align 6
.amdhsa_kernel standalone__gqa_softmax__prompt_kernel
  .amdhsa_next_free_vgpr {vgpr}
  .amdhsa_next_free_sgpr {sgpr}
  .amdhsa_accum_offset {accum}
  .amdhsa_group_segment_fixed_size 0
  .amdhsa_kernarg_size 48
  .amdhsa_user_sgpr_count 2
  .amdhsa_user_sgpr_kernarg_segment_ptr 1
  .amdhsa_system_sgpr_workgroup_id_x 1
.end_amdhsa_kernel
"""
import math, struct
C_SCALE = (128.0 ** -0.5) * math.log2(math.e)
def f32hex(x):
    return "0x%08x" % struct.unpack("<I", struct.pack("<f", x))[0]
```

```python
import sys
from common import *

out = []
def E(s): out.append(s)

KBASE = 0
VBASE = 8192
LDS_BYTES = 16384

vLane = 1
def vKaddr(t): return 2 + t
def vVaddr(db): return 10 + db
vKdma = [14, 15]
vVdma = 16
vM = [17, 18]
vL = [19, 20]
T0, T1, T2, T3, T4, T5 = 21, 22, 23, 24, 25, 26
def S(qb, r=None):
    b = 32 + qb * 16
    return b if r is None else b + r
def P(qb, r=None):
    b = 64 + qb * 8
    return b if r is None else b + r
def KF(t): return 80 + 4 * t
def VF(db, ks): return 112 + 4 * (ks * 4 + db)
QST = 144
def aO(qb, db): return qb * 64 + db * 16
def aQ(qb, t): return 128 + qb * 32 + t * 4
def vr(b, n): return f"v[{b}:{b+n-1}]"
def ar(b, n): return f"a[{b}:{b+n-1}]"

E("s_cmp_ge_u32 s2, 256")
E("s_cbranch_scc1 L_END")
E("s_load_dwordx4 s[4:7], s[0:1], 0")
E("s_load_dwordx4 s[8:11], s[0:1], 16")
E("s_and_b32 s12, s2, 7")
E("s_lshr_b32 s13, s2, 3")
E("s_and_b32 s33, s13, 3")
E("s_lshl_b32 s12, s12, 2")
E("s_or_b32 s12, s12, s33")
E("s_lshr_b32 s13, s13, 2")
E("v_lshrrev_b32 v27, 6, v0")
E("v_and_b32 v1, 63, v0")
E("v_readfirstlane_b32 s14, v27")
E("s_waitcnt lgkmcnt(0)")
E("s_mul_i32 s33, s12, 0x80000")
E("s_add_u32 s16, s6, s33")
E("s_addc_u32 s17, s7, 0")
E("s_mov_b32 s18, 0x80000")
E("s_mov_b32 s19, 0x00020000")
E("s_add_u32 s20, s8, s33")
E("s_addc_u32 s21, s9, 0")
E("s_mov_b32 s22, 0x80000")
E("s_mov_b32 s23, 0x00020000")
E("s_lshl_b32 s34, s12, 11")
E("s_lshl_b32 s35, s13, 8")
E("s_add_u32 s34, s34, s35")
E("s_lshl_b32 s35, s14, 6")
E("s_add_u32 s34, s34, s35")
E("s_lshl_b32 s34, s34, 8")
E("s_add_u32 s24, s4, s34")
E("s_addc_u32 s25, s5, 0")
E("s_mov_b32 s26, 16384")
E("s_mov_b32 s27, 0x00020000")
E("s_mov_b32 s36, 8192")
E("v_and_b32 v21, 31, v1")
E("v_lshrrev_b32 v22, 5, v1")
E("v_lshlrev_b32 v23, 8, v21")
E("v_lshl_add_u32 v23, v22, 4, v23")
for qb in range(2):
    for t in range(8):
        so = "0" if qb == 0 else "s36"
        E(f"buffer_load_dwordx4 {vr(QST + qb*32 + t*4, 4)}, v23, s[24:27], {so} offen offset:{32*t}")
E("v_and_b32 v24, 15, v21")
for t in range(8):
    E(f"v_add_u32 v25, {2*t}, v22")
    E("v_xor_b32 v25, v25, v24")
    E("v_lshlrev_b32 v25, 4, v25")
    E(f"v_lshl_add_u32 v{vKaddr(t)}, v21, 8, v25")
E("v_lshrrev_b32 v21, 4, v1")
E("v_bfe_u32 v22, v1, 2, 2")
E("v_and_b32 v24, 3, v1")
E("v_lshrrev_b32 v25, 1, v21")
E("v_lshl_add_u32 v25, v25, 2, v22")
E("v_lshlrev_b32 v25, 8, v25")
E("v_and_b32 v26, 1, v21")
E("v_lshl_add_u32 v25, v26, 5, v25")
E("v_lshl_add_u32 v25, v24, 3, v25")
for db in range(4):
    E(f"v_xor_b32 v26, {db}, v22")
    E(f"v_lshl_add_u32 v{vVaddr(db)}, v26, 6, v25")
E("v_lshrrev_b32 v21, 4, v1")
E("v_and_b32 v22, 15, v1")
E("v_lshl_add_u32 v24, v27, 3, v21")
for i in range(2):
    E(f"v_add_u32 v25, {4*i}, v24")
    E("v_and_b32 v26, 15, v25")
    E("v_xor_b32 v26, v26, v22")
    E("v_lshlrev_b32 v26, 4, v26")
    E("v_lshl_add_u32 v26, v25, 8, v26")
    E(f"v_subrev_u32 v{vKdma[i]}, {1024*i}, v26")
E("v_lshlrev_b32 v25, 2, v21")
E("v_xor_b32 v25, v25, v22")
E("v_lshlrev_b32 v25, 4, v25")
E(f"v_lshl_add_u32 v{vVdma}, v24, 8, v25")
E(f"s_lshl_b32 s30, s14, 11")
E(f"s_add_u32 s31, s30, {VBASE}")
E(f"s_add_u32 s30, s30, {KBASE}")
for i in range(128):
    E(f"v_accvgpr_write_b32 a{i}, 0")
for qb in range(2):
    E(f"v_mov_b32 v{vM[qb]}, 0xff800000")
    E(f"v_mov_b32 v{vL[qb]}, 0")
E(f"s_mov_b32 s34, {f32hex(C_SCALE)}")
E("s_waitcnt vmcnt(0)")
for i in range(64):
    r = QST + i
    E(f"v_lshlrev_b32 v21, 16, v{r}")
    E(f"v_and_b32 v22, 0xffff0000, v{r}")
    E("v_mul_f32 v21, s34, v21")
    E("v_mul_f32 v22, s34, v22")
    E("v_cvt_pk_bf16_f32 v23, v21, v22")
    E(f"v_accvgpr_write_b32 a{128+i}, v23")
E("s_mov_b32 s28, 0")
E("s_mov_b32 s29, 64")

E("L_LOOP:")
E("s_mov_b32 m0, s30")
E("s_nop 0")
E(f"buffer_load_dwordx4 v{vKdma[0]}, s[16:19], s28 offen lds")
E(f"buffer_load_dwordx4 v{vKdma[1]}, s[16:19], s28 offen offset:1024 lds")
E("s_mov_b32 m0, s31")
E("s_nop 0")
E(f"buffer_load_dwordx4 v{vVdma}, s[20:23], s28 offen lds")
E(f"buffer_load_dwordx4 v{vVdma}, s[20:23], s28 offen offset:1024 lds")
E("s_waitcnt vmcnt(0)")
E("s_barrier")
for t in range(8):
    E(f"ds_read_b128 {vr(KF(t),4)}, v{vKaddr(t)} offset:{KBASE}")
E("s_waitcnt lgkmcnt(0)")
for t in range(8):
    for qb in range(2):
        c = "0" if t == 0 else vr(S(qb), 16)
        E(f"v_mfma_f32_32x32x16_bf16 {vr(S(qb),16)}, {vr(KF(t),4)}, {ar(aQ(qb,t),4)}, {c}")
E("s_nop 15")
E("s_nop 15")
for qb in range(2):
    E(f"v_max3_f32 v21, v{S(qb,0)}, v{S(qb,1)}, v{S(qb,2)}")
    for r in range(3, 15, 2):
        E(f"v_max3_f32 v21, v21, v{S(qb,r)}, v{S(qb,r+1)}")
    E(f"v_max_f32 v21, v21, v{S(qb,15)}")
    E("v_mov_b32 v22, v21")
    E("s_nop 1")
    E("v_permlane32_swap_b32 v21, v22")
    E("s_nop 1")
    E("v_max_f32 v21, v21, v22")
    E(f"v_max_f32 v21, v21, v{vM[qb]}")
    E(f"v_sub_f32 v22, v{vM[qb]}, v21")
    E("v_exp_f32 v22, v22")
    E(f"v_mov_b32 v{vM[qb]}, v21")
    E("s_nop 1")
    E(f"v_mul_f32 v{vL[qb]}, v{vL[qb]}, v22")
    for db in range(4):
        for r in range(16):
            a = aO(qb, db) + r
            E(f"v_accvgpr_read_b32 v23, a{a}")
            E("s_nop 0")
            E("v_mul_f32 v23, v23, v22")
            E(f"v_accvgpr_write_b32 a{a}, v23")
    for r in range(0, 16, 2):
        E(f"v_sub_f32 v23, v{S(qb,r)}, v21")
        E(f"v_sub_f32 v24, v{S(qb,r+1)}, v21")
        E("v_exp_f32 v23, v23")
        E("v_exp_f32 v24, v24")
        E("s_nop 1")
        E(f"v_add_f32 v{vL[qb]}, v{vL[qb]}, v23")
        E(f"v_add_f32 v{vL[qb]}, v{vL[qb]}, v24")
        E(f"v_cvt_pk_bf16_f32 v{P(qb, r//2)}, v23, v24")
for ks in range(2):
    for db in range(4):
        for j in range(2):
            E(f"ds_read_b64_tr_b16 {vr(VF(db,ks)+2*j,2)}, v{vVaddr(db)} offset:{VBASE + (16*ks+8*j)*256}")
E("s_waitcnt lgkmcnt(0)")
E("s_nop 4")
for ks in range(2):
    for db in range(4):
        for qb in range(2):
            E(f"v_mfma_f32_32x32x16_bf16 {ar(aO(qb,db),16)}, {vr(VF(db,ks),4)}, {vr(P(qb)+4*ks,4)}, {ar(aO(qb,db),16)}")
E("s_barrier")
E("s_add_u32 s28, s28, 8192")
E("s_sub_u32 s29, s29, 1")
E("s_cmp_lg_u32 s29, 0")
E("s_cbranch_scc1 L_LOOP")
E("s_nop 15")
E("s_nop 15")
E("s_lshl_b32 s34, s12, 11")
E("s_lshl_b32 s35, s13, 8")
E("s_add_u32 s34, s34, s35")
E("s_lshl_b32 s35, s14, 6")
E("s_add_u32 s34, s34, s35")
E("s_lshl_b32 s34, s34, 8")
E("s_add_u32 s24, s10, s34")
E("s_addc_u32 s25, s11, 0")
E("s_mov_b32 s26, 16384")
E("s_mov_b32 s27, 0x00020000")
E("v_and_b32 v21, 31, v1")
E("v_lshrrev_b32 v22, 5, v1")
E("v_lshlrev_b32 v23, 8, v21")
E("v_lshl_add_u32 v23, v22, 3, v23")
for qb in range(2):
    E(f"v_mov_b32 v21, v{vL[qb]}")
    E("s_nop 1")
    E(f"v_permlane32_swap_b32 v{vL[qb]}, v21")
    E("s_nop 1")
    E(f"v_add_f32 v21, v{vL[qb]}, v21")
    E("v_rcp_f32 v21, v21")
    E("s_nop 1")
    so = "0" if qb == 0 else "s36"
    for db in range(4):
        for rq in range(4):
            a = aO(qb, db) + rq * 4
            for k in range(4):
                E(f"v_accvgpr_read_b32 v{24+k}, a{a+k}")
            E("s_nop 0")
            for k in range(4):
                E(f"v_mul_f32 v{24+k}, v{24+k}, v21")
            E("v_cvt_pk_bf16_f32 v24, v24, v25")
            E("v_cvt_pk_bf16_f32 v25, v26, v27")
            g = 4 * db + rq
            E(f"buffer_store_dwordx2 v[24:25], v23, s[24:27], {so} offen offset:{16*g}")
            E("s_nop 1")
E("L_END:")

txt = HEADER.format(grid=256, block=256, lds=LDS_BYTES) + "\n".join(out) + "\n" + FOOTER.format(vgpr=512, sgpr=102, accum=256)
open(sys.argv[1] if len(sys.argv) > 1 else "standalone__gqa_softmax__prompt.s", "w").write(txt)
```

```python
import sys
from common import *

R = 4
KRING = 0
VRING = R * 8192
LDS_BYTES = 2 * R * 8192
THETA = 16384.0

out = []
def E(s): out.append(s)

vLane = 1
def vKaddr(t): return 2 + t
def vVaddr(db): return 10 + db
vKdma = [14, 15]
vVdma = 16
vL = [17, 18]
vU = [19, 20]
T0, T1, T2 = 21, 22, 23
TMP = list(range(24, 32))
def S(p, qb, r=0): return 32 + p * 32 + qb * 16 + r
def P(p, qb, r=0): return 96 + p * 16 + qb * 8 + r
def NM(qb, r=0): return 128 + qb * 16 + r
def KF(t): return 160 + 4 * t
def VF(f): return 192 + 4 * f
QST = 192
def aO(qb, db): return qb * 64 + db * 16
def aQ(qb, t): return 128 + qb * 32 + t * 4
def vr(b, n): return f"v[{b}:{b+n-1}]"
def ar(b, n): return f"a[{b}:{b+n-1}]"

sKoff, sVoff, sWoff, sCnt, sThr = 28, 29, 30, 31, 32

def kread_gap(t): return 4 * t - 5
def vread_gap(f, j): return 4 * f - 4 + j
BAR_GAP = 26

def ds_events(slot):
    ev = []
    for t in range(8):
        g = kread_gap(t)
        if g >= 0: ev.append((g, 'K', t, slot + 1))
        else: ev.append((g + 32, 'K', t, slot + 2))
    for f in range(8):
        for j in range(2):
            g = vread_gap(f, j)
            if g >= 0: ev.append((g, 'V', (f, j), slot - 1))
            else: ev.append((g + 32, 'V', (f, j), slot))
    ev.sort(key=lambda e: e[0])
    return ev

def wait_count(slot, pos, need):
    seq = []
    for s in range(slot - 2, slot + 1):
        for (g, k, i, u) in ds_events(s):
            seq.append((32 * s + g, k, i, u))
    seq.sort(key=lambda e: e[0])
    limit = 32 * slot + pos - 1
    seq = [e for e in seq if e[0] <= limit]
    idx = [n for n, e in enumerate(seq) if (e[1], e[2], e[3]) == need]
    assert len(idx) == 1, (slot, pos, need)
    return len(seq) - 1 - idx[0]

NEXP_GAPS = 29
def exp_gap(k): return k * NEXP_GAPS // 32

def emit_slot(sm4, label_id):
    s = sm4 + 64
    p = s % 2
    gaps = [dict(early=[], valu=[], late=[]) for _ in range(32)]
    for (g, k, i, u) in ds_events(s):
        if k == 'K':
            gaps[g]['early'].append(f"ds_read_b128 {vr(KF(i),4)}, v{vKaddr(i)} offset:{KRING + (u % R) * 8192}")
        else:
            f, j = i
            ks, db = f // 4, f % 4
            gaps[g]['early'].append(f"ds_read_b64_tr_b16 {vr(VF(f)+2*j,2)}, v{vVaddr(db)} offset:{VRING + (u % R) * 8192 + (16*ks+8*j)*256}")
    for t in range(8):
        pos = 4 * t
        n = wait_count(s, pos, ('K', t, s + 1))
        gaps[(pos - 1) % 32]['late'].append(('W', pos, f"s_waitcnt lgkmcnt({n})"))
    for f in range(8):
        pos = 4 * f + 2
        n = wait_count(s, pos, ('V', (f, 1), s - 1))
        gaps[pos - 1]['late'].append(('W', pos, f"s_waitcnt lgkmcnt({n})"))
    first = [True, True]
    tmpi = 0
    pend = {}
    for k in range(32):
        job = k // 2; e = k % 2
        j = job // 2; qb = job % 2
        g = exp_gap(k)
        tr = TMP[k % len(TMP)]
        gaps[g]['valu'].append(f"v_exp_f32 v{tr}, v{S(p, qb, 2*j+e)}")
        pend[(job, e)] = tr
        ga = g + 1
        if e == 1:
            t0 = pend[(job, 0)]
            if j == 0:
                gaps[ga]['valu'].append(f"v_add_f32 v{vU[qb]}, v{t0}, v{tr}")
            else:
                gaps[ga]['valu'].append(f"v_add_f32 v{vU[qb]}, v{vU[qb]}, v{t0}")
                gaps[ga]['valu'].append(f"v_add_f32 v{vU[qb]}, v{vU[qb]}, v{tr}")
            gaps[min(ga + 1, 31)]['valu'].append(f"v_cvt_pk_bf16_f32 v{P(p, qb, j)}, v{t0}, v{tr}")
    kent = (s + 4) % R
    kent_prev = (s + 3) % R
    vent = (s + 1) % R
    gaps[2]['early'].append(f"buffer_load_dwordx4 v{vKdma[1]}, s[16:19], s{sKoff} offen offset:1024 lds")
    gaps[3]['late'].append(('S', 0, f"s_add_u32 s{sKoff}, s{sKoff}, 8192"))
    gaps[5]['late'].append(('S', 0, f"s_add_u32 m0, s{sWoff}, {VRING + vent * 8192}"))
    gaps[6]['early'].append(f"buffer_load_dwordx4 v{vVdma}, s[20:23], s{sVoff} offen lds")
    gaps[10]['early'].append(f"buffer_load_dwordx4 v{vVdma}, s[20:23], s{sVoff} offen offset:1024 lds")
    gaps[11]['late'].append(('S', 0, f"s_add_u32 s{sVoff}, s{sVoff}, 8192"))
    gaps[29]['late'].append(('S', 0, f"s_add_u32 m0, s{sWoff}, {KRING + kent * 8192}"))
    gaps[30]['early'].append(f"buffer_load_dwordx4 v{vKdma[0]}, s[16:19], s{sKoff} offen lds")
    gaps[BAR_GAP]['late'].append(('B', 0, "s_waitcnt vmcnt(4)"))
    gaps[BAR_GAP]['late'].append(('B', 1, "s_barrier"))
    for g in range(32):
        if g % 4 < 2:
            t = g // 4; qb = g % 4
            c = vr(NM(qb), 16) if t == 0 else vr(S(1 - p, qb), 16)
            E(f"v_mfma_f32_32x32x16_bf16 {vr(S(1-p,qb),16)}, {vr(KF(t),4)}, {ar(aQ(qb,t),4)}, {c}")
        else:
            f = g // 4; qb = g % 4 - 2
            ks, db = f // 4, f % 4
            E(f"v_mfma_f32_32x32x16_bf16 {ar(aO(qb,db),16)}, {vr(VF(f),4)}, {vr(P(1-p,qb,4*ks),4)}, {ar(aO(qb,db),16)}")
        for x in gaps[g]['early']: E(x)
        for x in gaps[g]['valu']: E(x)
        late = gaps[g]['late']
        for x in sorted(late, key=lambda z: {'S': 0, 'B': 1, 'W': 2}[z[0]] * 10 + z[1] if z[0] != 'W' else 20):
            E(x[2])
    E(f"v_max_f32 v{T0}, v{vU[0]}, v{vU[1]}")
    E(f"v_cmp_lt_f32 vcc, s{sThr}, v{T0}")
    E(f"s_cbranch_vccnz L_RARE_{label_id}")
    E(f"L_BACK_{label_id}:")
    E(f"v_add_f32 v{vL[0]}, v{vL[0]}, v{vU[0]}")
    E(f"v_add_f32 v{vL[1]}, v{vL[1]}, v{vU[1]}")

def emit_maxes(p, qb, dst):
    E(f"v_max3_f32 v{dst}, v{S(p,qb,0)}, v{S(p,qb,1)}, v{S(p,qb,2)}")
    for r in range(3, 15, 2):
        E(f"v_max3_f32 v{dst}, v{dst}, v{S(p,qb,r)}, v{S(p,qb,r+1)}")
    E(f"v_max_f32 v{dst}, v{dst}, v{S(p,qb,15)}")
    E(f"v_mov_b32 v{T2}, v{dst}")
    E("s_nop 1")
    E(f"v_permlane32_swap_b32 v{dst}, v{T2}")
    E("s_nop 1")
    E(f"v_max_f32 v{dst}, v{dst}, v{T2}")

def emit_softmax_plain(p):
    for qb in range(2):
        for j in range(8):
            a, b = TMP[0], TMP[1]
            E(f"v_exp_f32 v{a}, v{S(p,qb,2*j)}")
            E(f"v_exp_f32 v{b}, v{S(p,qb,2*j+1)}")
            E("s_nop 0")
            if j == 0:
                E(f"v_add_f32 v{vU[qb]}, v{a}, v{b}")
            else:
                E(f"v_add_f32 v{vU[qb]}, v{vU[qb]}, v{a}")
                E(f"v_add_f32 v{vU[qb]}, v{vU[qb]}, v{b}")
            E(f"v_cvt_pk_bf16_f32 v{P(p,qb,j)}, v{a}, v{b}")

def emit_rare(p, label_id):
    E(f"L_RARE_{label_id}:")
    E("s_nop 15")
    E("s_nop 15")
    dl = TMP[2]; al = TMP[3]
    for qb in range(2):
        emit_maxes(p, qb, dl)
        E(f"v_max_f32 v{dl}, 0, v{dl}")
        E(f"v_exp_f32_e64 v{al}, -v{dl}")
        for r in range(16):
            E(f"v_sub_f32 v{NM(qb,r)}, v{NM(qb,r)}, v{dl}")
        for r in range(16):
            E(f"v_sub_f32 v{S(p,qb,r)}, v{S(p,qb,r)}, v{dl}")
            E(f"v_sub_f32 v{S(1-p,qb,r)}, v{S(1-p,qb,r)}, v{dl}")
        E(f"v_mul_f32 v{vL[qb]}, v{vL[qb]}, v{al}")
        for db in range(4):
            for r in range(16):
                a = aO(qb, db) + r
                E(f"v_accvgpr_read_b32 v{TMP[4]}, a{a}")
                E("s_nop 0")
                E(f"v_mul_f32 v{TMP[4]}, v{TMP[4]}, v{al}")
                E(f"v_accvgpr_write_b32 a{a}, v{TMP[4]}")
    emit_softmax_plain(p)
    E("s_nop 4")
    E(f"s_branch L_BACK_{label_id}")

E("s_cmp_ge_u32 s2, 256")
E("s_cbranch_scc1 L_END")
E("s_load_dwordx4 s[4:7], s[0:1], 0")
E("s_load_dwordx4 s[8:11], s[0:1], 16")
E("s_and_b32 s12, s2, 7")
E("s_lshr_b32 s13, s2, 3")
E("s_and_b32 s33, s13, 3")
E("s_lshl_b32 s12, s12, 2")
E("s_or_b32 s12, s12, s33")
E("s_lshr_b32 s13, s13, 2")
E("v_lshrrev_b32 v27, 6, v0")
E("v_and_b32 v1, 63, v0")
E("v_readfirstlane_b32 s14, v27")
E("s_waitcnt lgkmcnt(0)")
E("s_mul_i32 s33, s12, 0x80000")
E("s_add_u32 s16, s6, s33")
E("s_addc_u32 s17, s7, 0")
E("s_mov_b32 s18, 0x80000")
E("s_mov_b32 s19, 0x00020000")
E("s_add_u32 s20, s8, s33")
E("s_addc_u32 s21, s9, 0")
E("s_mov_b32 s22, 0x80000")
E("s_mov_b32 s23, 0x00020000")
E("v_lshrrev_b32 v21, 4, v1")
E("v_and_b32 v22, 15, v1")
E("v_lshl_add_u32 v24, v27, 3, v21")
for i in range(2):
    E(f"v_add_u32 v25, {4*i}, v24")
    E("v_and_b32 v26, 15, v25")
    E("v_xor_b32 v26, v26, v22")
    E("v_lshlrev_b32 v26, 4, v26")
    E("v_lshl_add_u32 v26, v25, 8, v26")
    E(f"v_subrev_u32 v{vKdma[i]}, {1024*i}, v26")
E("v_lshlrev_b32 v25, 2, v21")
E("v_xor_b32 v25, v25, v22")
E("v_lshlrev_b32 v25, 4, v25")
E(f"v_lshl_add_u32 v{vVdma}, v24, 8, v25")
E(f"s_lshl_b32 s{sWoff}, s14, 11")
E(f"s_mov_b32 s{sKoff}, 0")
E(f"s_mov_b32 s{sVoff}, 0")
for u in range(3):
    E(f"s_add_u32 m0, s{sWoff}, {KRING + u * 8192}")
    E("s_nop 0")
    E(f"buffer_load_dwordx4 v{vKdma[0]}, s[16:19], s{sKoff} offen lds")
    E(f"buffer_load_dwordx4 v{vKdma[1]}, s[16:19], s{sKoff} offen offset:1024 lds")
    E(f"s_add_u32 s{sKoff}, s{sKoff}, 8192")
E(f"s_add_u32 m0, s{sWoff}, {VRING}")
E("s_nop 0")
E(f"buffer_load_dwordx4 v{vVdma}, s[20:23], s{sVoff} offen lds")
E(f"buffer_load_dwordx4 v{vVdma}, s[20:23], s{sVoff} offen offset:1024 lds")
E(f"s_add_u32 s{sVoff}, s{sVoff}, 8192")
E("s_lshl_b32 s34, s12, 11")
E("s_lshl_b32 s35, s13, 8")
E("s_add_u32 s34, s34, s35")
E("s_lshl_b32 s35, s14, 6")
E("s_add_u32 s34, s34, s35")
E("s_lshl_b32 s34, s34, 8")
E("s_add_u32 s24, s4, s34")
E("s_addc_u32 s25, s5, 0")
E("s_mov_b32 s26, 16384")
E("s_mov_b32 s27, 0x00020000")
E("s_mov_b32 s36, 8192")
E("v_and_b32 v21, 31, v1")
E("v_lshrrev_b32 v22, 5, v1")
E("v_lshlrev_b32 v23, 8, v21")
E("v_lshl_add_u32 v23, v22, 4, v23")
for qb in range(2):
    for t in range(8):
        so = "0" if qb == 0 else "s36"
        E(f"buffer_load_dwordx4 {vr(QST + qb*32 + t*4, 4)}, v23, s[24:27], {so} offen offset:{32*t}")
E("v_and_b32 v24, 15, v21")
for t in range(8):
    E(f"v_add_u32 v25, {2*t}, v22")
    E("v_xor_b32 v25, v25, v24")
    E("v_lshlrev_b32 v25, 4, v25")
    E(f"v_lshl_add_u32 v{vKaddr(t)}, v21, 8, v25")
E("v_lshrrev_b32 v21, 4, v1")
E("v_bfe_u32 v22, v1, 2, 2")
E("v_and_b32 v24, 3, v1")
E("v_lshrrev_b32 v25, 1, v21")
E("v_lshl_add_u32 v25, v25, 2, v22")
E("v_lshlrev_b32 v25, 8, v25")
E("v_and_b32 v26, 1, v21")
E("v_lshl_add_u32 v25, v26, 5, v25")
E("v_lshl_add_u32 v25, v24, 3, v25")
for db in range(4):
    E(f"v_xor_b32 v26, {db}, v22")
    E(f"v_lshl_add_u32 v{vVaddr(db)}, v26, 6, v25")
E("v_mov_b32 v24, 0")
E("v_mov_b32 v25, 0")
E("v_mov_b32 v26, 0")
E("v_mov_b32 v27, 0")
E("v_lshlrev_b32 v21, 4, v0")
E(f"ds_write_b128 v21, v[24:27] offset:{VRING + (R-1)*8192}")
E(f"ds_write_b128 v21, v[24:27] offset:{VRING + (R-1)*8192 + 4096}")
for i in range(128):
    E(f"v_accvgpr_write_b32 a{i}, 0")
for i in range(16):
    E(f"v_mov_b32 v{P(1,0,i)}, 0")
E(f"v_mov_b32 v{vL[0]}, 0")
E(f"v_mov_b32 v{vL[1]}, 0")
E(f"s_mov_b32 s{sThr}, {f32hex(THETA)}")
E(f"s_mov_b32 s34, {f32hex(C_SCALE)}")
E("s_waitcnt vmcnt(0)")
for i in range(64):
    r = QST + i
    E(f"v_lshlrev_b32 v21, 16, v{r}")
    E(f"v_and_b32 v22, 0xffff0000, v{r}")
    E("v_mul_f32 v21, s34, v21")
    E("v_mul_f32 v22, s34, v22")
    E("v_cvt_pk_bf16_f32 v23, v21, v22")
    E(f"v_accvgpr_write_b32 a{128+i}, v23")
E("s_waitcnt lgkmcnt(0)")
E("s_barrier")
for t in range(8):
    E(f"ds_read_b128 {vr(KF(t),4)}, v{vKaddr(t)} offset:{KRING}")
E("s_waitcnt lgkmcnt(0)")
for t in range(8):
    for qb in range(2):
        c = "0" if t == 0 else vr(S(0, qb), 16)
        E(f"v_mfma_f32_32x32x16_bf16 {vr(S(0,qb),16)}, {vr(KF(t),4)}, {ar(aQ(qb,t),4)}, {c}")
E(f"s_add_u32 m0, s{sWoff}, {KRING + 3 * 8192}")
E(f"ds_read_b128 {vr(KF(0),4)}, v{vKaddr(0)} offset:{KRING + 8192}")
E(f"ds_read_b128 {vr(KF(1),4)}, v{vKaddr(1)} offset:{KRING + 8192}")
for j in range(2):
    E(f"ds_read_b64_tr_b16 {vr(VF(0)+2*j,2)}, v{vVaddr(0)} offset:{VRING + (R-1) * 8192 + 8*j*256}")
E(f"buffer_load_dwordx4 v{vKdma[0]}, s[16:19], s{sKoff} offen lds")
E("s_nop 15")
E("s_nop 15")
for qb in range(2):
    emit_maxes(0, qb, T0)
    for r in range(16):
        E(f"v_sub_f32 v{NM(qb,r)}, 0, v{T0}")
        E(f"v_sub_f32 v{S(0,qb,r)}, v{S(0,qb,r)}, v{T0}")
E("s_waitcnt lgkmcnt(0)")
E(f"s_mov_b32 s{sCnt}, 16")
E("s_nop 1")
E("L_LOOP:")
for sm4 in range(4):
    emit_slot(sm4, sm4)
E(f"s_sub_u32 s{sCnt}, s{sCnt}, 1")
E(f"s_cmp_lg_u32 s{sCnt}, 0")
E("s_cbranch_scc1 L_LOOP")
for f in range(1, 8):
    ks, db = f // 4, f % 4
    for j in range(2):
        E(f"ds_read_b64_tr_b16 {vr(VF(f)+2*j,2)}, v{vVaddr(db)} offset:{VRING + 3 * 8192 + (16*ks+8*j)*256}")
E("s_waitcnt lgkmcnt(0)")
for f in range(8):
    ks, db = f // 4, f % 4
    for qb in range(2):
        E(f"v_mfma_f32_32x32x16_bf16 {ar(aO(qb,db),16)}, {vr(VF(f),4)}, {vr(P(1,qb,4*ks),4)}, {ar(aO(qb,db),16)}")
E("s_lshl_b32 s34, s12, 11")
E("s_lshl_b32 s35, s13, 8")
E("s_add_u32 s34, s34, s35")
E("s_lshl_b32 s35, s14, 6")
E("s_add_u32 s34, s34, s35")
E("s_lshl_b32 s34, s34, 8")
E("s_add_u32 s24, s10, s34")
E("s_addc_u32 s25, s11, 0")
E("s_mov_b32 s26, 16384")
E("s_mov_b32 s27, 0x00020000")
E("v_and_b32 v21, 31, v1")
E("v_lshrrev_b32 v22, 5, v1")
E("v_lshlrev_b32 v23, 8, v21")
E("v_lshl_add_u32 v23, v22, 4, v23")
E("s_nop 15")
E("s_nop 15")
for qb in range(2):
    E(f"v_mov_b32 v21, v{vL[qb]}")
    E("s_nop 1")
    E(f"v_permlane32_swap_b32 v{vL[qb]}, v21")
    E("s_nop 1")
    E(f"v_add_f32 v21, v{vL[qb]}, v21")
    E("v_rcp_f32 v21, v21")
    E("s_nop 1")
    so = "0" if qb == 0 else "s36"
    for gp in range(8):
        base = 32 + (gp % 4) * 8
        for k in range(8):
            g = 2 * gp + k // 4
            a = aO(qb, g // 4) + (g % 4) * 4 + (k % 4)
            E(f"v_accvgpr_read_b32 v{base+k}, a{a}")
        for k in range(8):
            E(f"v_mul_f32 v{base+k}, v{base+k}, v21")
        o = 64 + (gp % 4) * 4
        E(f"v_cvt_pk_bf16_f32 v{o}, v{base}, v{base+1}")
        E(f"v_cvt_pk_bf16_f32 v{o+1}, v{base+2}, v{base+3}")
        E(f"v_cvt_pk_bf16_f32 v{o+2}, v{base+4}, v{base+5}")
        E(f"v_cvt_pk_bf16_f32 v{o+3}, v{base+6}, v{base+7}")
        E("s_nop 1")
        E(f"v_permlane32_swap_b32 v{o}, v{o+2}")
        E(f"v_permlane32_swap_b32 v{o+1}, v{o+3}")
        E(f"buffer_store_dwordx4 v[{o}:{o+3}], v23, s[24:27], {so} offen offset:{32*gp}")
E("s_branch L_END")
for sm4 in range(4):
    emit_rare(sm4 % 2, sm4)
E("L_END:")

txt = HEADER.format(grid=256, block=256, lds=LDS_BYTES) + "\n".join(out) + "\n" + FOOTER.format(vgpr=512, sgpr=102, accum=256)
open(sys.argv[1] if len(sys.argv) > 1 else "standalone__gqa_softmax__prompt.s", "w").write(txt)
```

```python
import sys, os
from common import *
STAMP = os.environ.get("STAMP") == "1"

R = 4
KRING = 0
VRING = R * 8192
LDS_BYTES = 2 * R * 8192
THETA = 16384.0

out = []
def E(s): out.append(s)

vLane = 1
def vKaddr(t): return 2 + t
def vVaddr(db): return 10 + db
vKdma = [14, 15]
vVdma = 16
vL = [17, 18]
vU = [19, 20]
T0, T1, T2 = 21, 22, 23
TMP = list(range(24, 32))
def S(p, qb, r=0): return 32 + p * 32 + qb * 16 + r
def P(p, qb, r=0): return 96 + p * 16 + qb * 8 + r
def NM(qb, r=0): return 128 + qb * 16 + r
def KF(t): return 160 + 4 * t
def VF(f): return 192 + 4 * f
QST = 192
def aO(qb, db): return qb * 64 + db * 16
def aQ(qb, t): return 128 + qb * 32 + t * 4
def vr(b, n): return f"v[{b}:{b+n-1}]"
def ar(b, n): return f"a[{b}:{b+n-1}]"

sKoff, sVoff, sWoff, sCnt, sThr = 28, 29, 30, 31, 32

def kread_gap(t): return 4 * t - 5
def vread_gap(f, j): return 4 * f - 4 + j
BAR_GAP = 26

def ds_events(slot):
    ev = []
    for t in range(8):
        g = kread_gap(t)
        if g >= 0: ev.append((g, 'K', t, slot + 1))
        else: ev.append((g + 32, 'K', t, slot + 2))
    for f in range(8):
        for j in range(2):
            g = vread_gap(f, j)
            if g >= 0: ev.append((g, 'V', (f, j), slot - 1))
            else: ev.append((g + 32, 'V', (f, j), slot))
    ev.sort(key=lambda e: e[0])
    return ev

def wait_count(slot, pos, need):
    seq = []
    for s in range(slot - 2, slot + 1):
        for (g, k, i, u) in ds_events(s):
            seq.append((32 * s + g, k, i, u))
    seq.sort(key=lambda e: e[0])
    limit = 32 * slot + pos - 1
    seq = [e for e in seq if e[0] <= limit]
    idx = [n for n, e in enumerate(seq) if (e[1], e[2], e[3]) == need]
    assert len(idx) == 1, (slot, pos, need)
    return len(seq) - 1 - idx[0]

NEXP_GAPS = 29
DMA_COST = 16
def exp_gap(k): return k * NEXP_GAPS // 32

def emit_slot(sm4, label_id):
    s = sm4 + 64
    p = s % 2
    gaps = [dict(early=[], valu=[], late=[]) for _ in range(32)]
    for (g, k, i, u) in ds_events(s):
        if k == 'K':
            gaps[g]['early'].append(f"ds_read_b128 {vr(KF(i),4)}, v{vKaddr(i)} offset:{KRING + (u % R) * 8192}")
        else:
            f, j = i
            ks, db = f // 4, f % 4
            gaps[g]['early'].append(f"ds_read_b64_tr_b16 {vr(VF(f)+2*j,2)}, v{vVaddr(db)} offset:{VRING + (u % R) * 8192 + (16*ks+8*j)*256}")
    for t in range(8):
        pos = 4 * t
        n = wait_count(s, pos, ('K', t, s + 1))
        gaps[(pos - 1) % 32]['late'].append(('W', pos, f"s_waitcnt lgkmcnt({n})"))
    for f in range(8):
        pos = 4 * f + 2
        n = wait_count(s, pos, ('V', (f, 1), s - 1))
        gaps[pos - 1]['late'].append(('W', pos, f"s_waitcnt lgkmcnt({n})"))
    kent = (s + 4) % R
    vent = (s + 1) % R
    gaps[2]['early'].append(f"buffer_load_dwordx4 v{vKdma[1]}, s[16:19], s{sKoff} offen offset:1024 lds")
    gaps[3]['late'].append(('S', 0, f"s_add_u32 s{sKoff}, s{sKoff}, 8192"))
    gaps[5]['late'].append(('S', 0, f"s_add_u32 m0, s{sWoff}, {VRING + vent * 8192}"))
    gaps[6]['early'].append(f"buffer_load_dwordx4 v{vVdma}, s[20:23], s{sVoff} offen lds")
    gaps[10]['early'].append(f"buffer_load_dwordx4 v{vVdma}, s[20:23], s{sVoff} offen offset:1024 lds")
    gaps[11]['late'].append(('S', 0, f"s_add_u32 s{sVoff}, s{sVoff}, 8192"))
    gaps[29]['late'].append(('S', 0, f"s_add_u32 m0, s{sWoff}, {KRING + kent * 8192}"))
    gaps[30]['early'].append(f"buffer_load_dwordx4 v{vKdma[0]}, s[16:19], s{sKoff} offen lds")
    gaps[BAR_GAP]['late'].append(('B', 0, "s_waitcnt vmcnt(4)"))
    gaps[BAR_GAP]['late'].append(('B', 1, "s_barrier"))
    cap = []
    for g in range(32):
        c = 24
        for x in gaps[g]['early']:
            c -= 4 if x.startswith('ds_') else DMA_COST
        c -= 4 * len(gaps[g]['late'])
        if g == 31: c -= 24
        cap.append(c)
    exps = list(range(32))
    adds = []
    cvts = []
    tmp_free_at = {}
    tmp_of = {}
    done_exp_gap = {}
    ei = 0
    pend_small = []
    for g in range(32):
        c = cap[g]
        progress = True
        while progress:
            progress = False
            for item in list(pend_small):
                if item[0] <= g and c >= 4:
                    gaps[g]['valu'].append(item[1]); c -= 4
                    for tr in item[2]: tmp_free_at[tr] = tmp_free_at.get(tr, 0) - 1
                    pend_small.remove(item); progress = True
                    break
        while ei < 32 and c >= 8:
            k = ei
            tr = TMP[k % len(TMP)]
            if tmp_free_at.get(tr, 0) > 0: break
            job = k // 2; e = k % 2
            j = job // 2; qb = job % 2
            gaps[g]['valu'].append(f"v_exp_f32 v{tr}, v{S(p, qb, 2*j+e)}")
            c -= 8
            tmp_of[k] = tr
            if e == 1:
                t0 = tmp_of[k - 1]
                tmp_free_at[t0] = 2; tmp_free_at[tr] = 2
                if j == 0:
                    pend_small.append((g + 1, f"v_add_f32 v{vU[qb]}, v{t0}, v{tr}", (t0, tr)))
                else:
                    pend_small.append((g + 1, f"v_add_f32 v{vU[qb]}, v{vU[qb]}, v{t0}", (t0,)))
                    pend_small.append((g + 1, f"v_add_f32 v{vU[qb]}, v{vU[qb]}, v{tr}", (tr,)))
                pend_small.append((g + 1, f"v_cvt_pk_bf16_f32 v{P(p, qb, j)}, v{t0}, v{tr}", (t0, tr)))
            ei += 1
    assert ei == 32 and not pend_small, ("VALU did not fit", ei, pend_small)
    for g in range(32):
        if g % 4 < 2:
            t = g // 4; qb = g % 4
            c = vr(NM(qb), 16) if t == 0 else vr(S(1 - p, qb), 16)
            E(f"v_mfma_f32_32x32x16_bf16 {vr(S(1-p,qb),16)}, {vr(KF(t),4)}, {ar(aQ(qb,t),4)}, {c}")
        else:
            f = g // 4; qb = g % 4 - 2
            ks, db = f // 4, f % 4
            E(f"v_mfma_f32_32x32x16_bf16 {ar(aO(qb,db),16)}, {vr(VF(f),4)}, {vr(P(1-p,qb,4*ks),4)}, {ar(aO(qb,db),16)}")
        for x in gaps[g]['early']: E(x)
        for x in gaps[g]['valu']: E(x)
        late = gaps[g]['late']
        for x in sorted(late, key=lambda z: {'S': 0, 'B': 1, 'W': 2}[z[0]] * 10 + z[1] if z[0] != 'W' else 20):
            E(x[2])
    E(f"v_max_f32 v{T0}, v{vU[0]}, v{vU[1]}")
    E(f"v_cmp_lt_f32 vcc, s{sThr}, v{T0}")
    E(f"s_cbranch_vccnz L_RARE_{label_id}")
    E(f"L_BACK_{label_id}:")
    E(f"v_add_f32 v{vL[0]}, v{vL[0]}, v{vU[0]}")
    E(f"v_add_f32 v{vL[1]}, v{vL[1]}, v{vU[1]}")

def emit_maxes(p, qb, dst):
    E(f"v_max3_f32 v{dst}, v{S(p,qb,0)}, v{S(p,qb,1)}, v{S(p,qb,2)}")
    for r in range(3, 15, 2):
        E(f"v_max3_f32 v{dst}, v{dst}, v{S(p,qb,r)}, v{S(p,qb,r+1)}")
    E(f"v_max_f32 v{dst}, v{dst}, v{S(p,qb,15)}")
    E(f"v_mov_b32 v{T2}, v{dst}")
    E("s_nop 1")
    E(f"v_permlane32_swap_b32 v{dst}, v{T2}")
    E("s_nop 1")
    E(f"v_max_f32 v{dst}, v{dst}, v{T2}")

def emit_softmax_plain(p):
    for qb in range(2):
        for j in range(8):
            a, b = TMP[0], TMP[1]
            E(f"v_exp_f32 v{a}, v{S(p,qb,2*j)}")
            E(f"v_exp_f32 v{b}, v{S(p,qb,2*j+1)}")
            E("s_nop 0")
            if j == 0:
                E(f"v_add_f32 v{vU[qb]}, v{a}, v{b}")
            else:
                E(f"v_add_f32 v{vU[qb]}, v{vU[qb]}, v{a}")
                E(f"v_add_f32 v{vU[qb]}, v{vU[qb]}, v{b}")
            E(f"v_cvt_pk_bf16_f32 v{P(p,qb,j)}, v{a}, v{b}")

def emit_rare(p, label_id):
    E(f"L_RARE_{label_id}:")
    E("s_nop 15")
    E("s_nop 15")
    dl = TMP[2]; al = TMP[3]
    for qb in range(2):
        emit_maxes(p, qb, dl)
        E(f"v_max_f32 v{dl}, 0, v{dl}")
        E(f"v_exp_f32_e64 v{al}, -v{dl}")
        for r in range(16):
            E(f"v_sub_f32 v{NM(qb,r)}, v{NM(qb,r)}, v{dl}")
        for r in range(16):
            E(f"v_sub_f32 v{S(p,qb,r)}, v{S(p,qb,r)}, v{dl}")
            E(f"v_sub_f32 v{S(1-p,qb,r)}, v{S(1-p,qb,r)}, v{dl}")
        E(f"v_mul_f32 v{vL[qb]}, v{vL[qb]}, v{al}")
        for db in range(4):
            for r in range(16):
                a = aO(qb, db) + r
                E(f"v_accvgpr_read_b32 v{TMP[4]}, a{a}")
                E("s_nop 0")
                E(f"v_mul_f32 v{TMP[4]}, v{TMP[4]}, v{al}")
                E(f"v_accvgpr_write_b32 a{a}, v{TMP[4]}")
    emit_softmax_plain(p)
    E("s_nop 4")
    E(f"s_branch L_BACK_{label_id}")

def stamp(i):
    if not STAMP: return
    E(f"s_memtime s[40:41]")
    E("s_waitcnt lgkmcnt(0)")
    E(f"s_mov_b32 s{44+i}, s40")
if STAMP:
    stamp(0)
    E("s_memrealtime s[52:53]")
    E("s_waitcnt lgkmcnt(0)")
E("s_cmp_ge_u32 s2, 256")
E("s_cbranch_scc1 L_END")
E("s_load_dwordx4 s[4:7], s[0:1], 0")
E("s_load_dwordx4 s[8:11], s[0:1], 16")
E("s_and_b32 s12, s2, 7")
E("s_lshr_b32 s13, s2, 3")
E("s_and_b32 s33, s13, 3")
E("s_lshl_b32 s12, s12, 2")
E("s_or_b32 s12, s12, s33")
E("s_lshr_b32 s13, s13, 2")
E("v_lshrrev_b32 v27, 6, v0")
E("v_and_b32 v1, 63, v0")
E("v_readfirstlane_b32 s14, v27")
E("s_waitcnt lgkmcnt(0)")
E("s_mul_i32 s33, s12, 0x80000")
E("s_add_u32 s16, s6, s33")
E("s_addc_u32 s17, s7, 0")
E("s_mov_b32 s18, 0x80000")
E("s_mov_b32 s19, 0x00020000")
E("s_add_u32 s20, s8, s33")
E("s_addc_u32 s21, s9, 0")
E("s_mov_b32 s22, 0x80000")
E("s_mov_b32 s23, 0x00020000")
E("v_lshrrev_b32 v21, 4, v1")
E("v_and_b32 v22, 15, v1")
E("v_lshl_add_u32 v24, v27, 3, v21")
for i in range(2):
    E(f"v_add_u32 v25, {4*i}, v24")
    E("v_and_b32 v26, 15, v25")
    E("v_xor_b32 v26, v26, v22")
    E("v_lshlrev_b32 v26, 4, v26")
    E("v_lshl_add_u32 v26, v25, 8, v26")
    E(f"v_subrev_u32 v{vKdma[i]}, {1024*i}, v26")
E("v_lshlrev_b32 v25, 2, v21")
E("v_xor_b32 v25, v25, v22")
E("v_lshlrev_b32 v25, 4, v25")
E(f"v_lshl_add_u32 v{vVdma}, v24, 8, v25")
E(f"s_lshl_b32 s{sWoff}, s14, 11")
E(f"s_mov_b32 s{sKoff}, 0")
E(f"s_mov_b32 s{sVoff}, 0")
for u in range(3):
    E(f"s_add_u32 m0, s{sWoff}, {KRING + u * 8192}")
    E("s_nop 0")
    E(f"buffer_load_dwordx4 v{vKdma[0]}, s[16:19], s{sKoff} offen lds")
    E(f"buffer_load_dwordx4 v{vKdma[1]}, s[16:19], s{sKoff} offen offset:1024 lds")
    E(f"s_add_u32 s{sKoff}, s{sKoff}, 8192")
E(f"s_add_u32 m0, s{sWoff}, {VRING}")
E("s_nop 0")
E(f"buffer_load_dwordx4 v{vVdma}, s[20:23], s{sVoff} offen lds")
E(f"buffer_load_dwordx4 v{vVdma}, s[20:23], s{sVoff} offen offset:1024 lds")
E(f"s_add_u32 s{sVoff}, s{sVoff}, 8192")
E("s_lshl_b32 s34, s12, 11")
E("s_lshl_b32 s35, s13, 8")
E("s_add_u32 s34, s34, s35")
E("s_lshl_b32 s35, s14, 6")
E("s_add_u32 s34, s34, s35")
E("s_lshl_b32 s34, s34, 8")
E("s_add_u32 s24, s4, s34")
E("s_addc_u32 s25, s5, 0")
E("s_mov_b32 s26, 16384")
E("s_mov_b32 s27, 0x00020000")
E("s_mov_b32 s36, 8192")
E("v_and_b32 v21, 31, v1")
E("v_lshrrev_b32 v22, 5, v1")
E("v_lshlrev_b32 v23, 8, v21")
E("v_lshl_add_u32 v23, v22, 4, v23")
for qb in range(2):
    for t in range(8):
        so = "0" if qb == 0 else "s36"
        E(f"buffer_load_dwordx4 {vr(QST + qb*32 + t*4, 4)}, v23, s[24:27], {so} offen offset:{32*t}")
E("v_and_b32 v24, 15, v21")
for t in range(8):
    E(f"v_add_u32 v25, {2*t}, v22")
    E("v_xor_b32 v25, v25, v24")
    E("v_lshlrev_b32 v25, 4, v25")
    E(f"v_lshl_add_u32 v{vKaddr(t)}, v21, 8, v25")
E("v_lshrrev_b32 v21, 4, v1")
E("v_bfe_u32 v22, v1, 2, 2")
E("v_and_b32 v24, 3, v1")
E("v_lshrrev_b32 v25, 1, v21")
E("v_lshl_add_u32 v25, v25, 2, v22")
E("v_lshlrev_b32 v25, 8, v25")
E("v_and_b32 v26, 1, v21")
E("v_lshl_add_u32 v25, v26, 5, v25")
E("v_lshl_add_u32 v25, v24, 3, v25")
for db in range(4):
    E(f"v_xor_b32 v26, {db}, v22")
    E(f"v_lshl_add_u32 v{vVaddr(db)}, v26, 6, v25")
E("v_mov_b32 v24, 0")
E("v_mov_b32 v25, 0")
E("v_mov_b32 v26, 0")
E("v_mov_b32 v27, 0")
E("v_lshlrev_b32 v21, 4, v0")
E(f"ds_write_b128 v21, v[24:27] offset:{VRING + (R-1)*8192}")
E(f"ds_write_b128 v21, v[24:27] offset:{VRING + (R-1)*8192 + 4096}")
for i in range(128):
    E(f"v_accvgpr_write_b32 a{i}, 0")
for i in range(16):
    E(f"v_mov_b32 v{P(1,0,i)}, 0")
E(f"v_mov_b32 v{vL[0]}, 0")
E(f"v_mov_b32 v{vL[1]}, 0")
E(f"s_mov_b32 s{sThr}, {f32hex(THETA)}")
E(f"s_mov_b32 s34, {f32hex(C_SCALE)}")
E("s_waitcnt vmcnt(0)")
for i in range(64):
    r = QST + i
    E(f"v_lshlrev_b32 v21, 16, v{r}")
    E(f"v_and_b32 v22, 0xffff0000, v{r}")
    E("v_mul_f32 v21, s34, v21")
    E("v_mul_f32 v22, s34, v22")
    E("v_cvt_pk_bf16_f32 v23, v21, v22")
    E(f"v_accvgpr_write_b32 a{128+i}, v23")
E("s_waitcnt lgkmcnt(0)")
E("s_barrier")
for t in range(8):
    E(f"ds_read_b128 {vr(KF(t),4)}, v{vKaddr(t)} offset:{KRING}")
E("s_waitcnt lgkmcnt(0)")
for t in range(8):
    for qb in range(2):
        c = "0" if t == 0 else vr(S(0, qb), 16)
        E(f"v_mfma_f32_32x32x16_bf16 {vr(S(0,qb),16)}, {vr(KF(t),4)}, {ar(aQ(qb,t),4)}, {c}")
E(f"s_add_u32 m0, s{sWoff}, {KRING + 3 * 8192}")
E(f"ds_read_b128 {vr(KF(0),4)}, v{vKaddr(0)} offset:{KRING + 8192}")
E(f"ds_read_b128 {vr(KF(1),4)}, v{vKaddr(1)} offset:{KRING + 8192}")
for j in range(2):
    E(f"ds_read_b64_tr_b16 {vr(VF(0)+2*j,2)}, v{vVaddr(0)} offset:{VRING + (R-1) * 8192 + 8*j*256}")
E(f"buffer_load_dwordx4 v{vKdma[0]}, s[16:19], s{sKoff} offen lds")
E("s_nop 15")
E("s_nop 15")
for qb in range(2):
    emit_maxes(0, qb, T0)
    for r in range(16):
        E(f"v_sub_f32 v{NM(qb,r)}, 0, v{T0}")
        E(f"v_sub_f32 v{S(0,qb,r)}, v{S(0,qb,r)}, v{T0}")
E("s_waitcnt lgkmcnt(0)")
E(f"s_mov_b32 s{sCnt}, 16")
E("s_nop 1")
stamp(1)
E("L_LOOP:")
for sm4 in range(4):
    emit_slot(sm4, sm4)
E(f"s_sub_u32 s{sCnt}, s{sCnt}, 1")
E(f"s_cmp_lg_u32 s{sCnt}, 0")
E("s_cbranch_scc1 L_LOOP")
stamp(2)
for f in range(1, 8):
    ks, db = f // 4, f % 4
    for j in range(2):
        E(f"ds_read_b64_tr_b16 {vr(VF(f)+2*j,2)}, v{vVaddr(db)} offset:{VRING + 3 * 8192 + (16*ks+8*j)*256}")
E("s_waitcnt lgkmcnt(0)")
for f in range(8):
    ks, db = f // 4, f % 4
    for qb in range(2):
        E(f"v_mfma_f32_32x32x16_bf16 {ar(aO(qb,db),16)}, {vr(VF(f),4)}, {vr(P(1,qb,4*ks),4)}, {ar(aO(qb,db),16)}")
E("s_lshl_b32 s34, s12, 11")
E("s_lshl_b32 s35, s13, 8")
E("s_add_u32 s34, s34, s35")
E("s_lshl_b32 s35, s14, 6")
E("s_add_u32 s34, s34, s35")
E("s_lshl_b32 s34, s34, 8")
E("s_add_u32 s24, s10, s34")
E("s_addc_u32 s25, s11, 0")
E("s_mov_b32 s26, 16384")
E("s_mov_b32 s27, 0x00020000")
E("v_and_b32 v21, 31, v1")
E("v_lshrrev_b32 v22, 5, v1")
E("v_lshlrev_b32 v23, 8, v21")
E("v_lshl_add_u32 v23, v22, 4, v23")
E("s_nop 15")
E("s_nop 15")
for qb in range(2):
    E(f"v_mov_b32 v21, v{vL[qb]}")
    E("s_nop 1")
    E(f"v_permlane32_swap_b32 v{vL[qb]}, v21")
    E("s_nop 1")
    E(f"v_add_f32 v21, v{vL[qb]}, v21")
    E("v_rcp_f32 v21, v21")
    E("s_nop 1")
    so = "0" if qb == 0 else "s36"
    for gp in range(8):
        base = 32 + (gp % 4) * 8
        for k in range(8):
            g = 2 * gp + k // 4
            a = aO(qb, g // 4) + (g % 4) * 4 + (k % 4)
            E(f"v_accvgpr_read_b32 v{base+k}, a{a}")
        for k in range(8):
            E(f"v_mul_f32 v{base+k}, v{base+k}, v21")
        o = 64 + (gp % 4) * 4
        E(f"v_cvt_pk_bf16_f32 v{o}, v{base}, v{base+1}")
        E(f"v_cvt_pk_bf16_f32 v{o+1}, v{base+2}, v{base+3}")
        E(f"v_cvt_pk_bf16_f32 v{o+2}, v{base+4}, v{base+5}")
        E(f"v_cvt_pk_bf16_f32 v{o+3}, v{base+6}, v{base+7}")
        E("s_nop 1")
        E(f"v_permlane32_swap_b32 v{o}, v{o+2}")
        E(f"v_permlane32_swap_b32 v{o+1}, v{o+3}")
        E(f"buffer_store_dwordx4 v[{o}:{o+3}], v23, s[24:27], {so} offen offset:{32*gp}")
if STAMP:
    E("s_waitcnt vmcnt(0)")
    stamp(3)
    E("s_load_dwordx2 s[40:41], s[0:1], 40")
    E("s_waitcnt lgkmcnt(0)")
    E("v_lshrrev_b32 v21, 6, v0")
    E("s_lshl_b32 s42, s2, 2")
    E("v_add_u32 v21, s42, v21")
    E("v_lshlrev_b32 v21, 4, v21")
    for i in range(1, 4):
        E(f"s_sub_u32 s{48+i}, s{44+i}, s44")
    E("s_memrealtime s[54:55]")
    E("s_waitcnt lgkmcnt(0)")
    E("s_sub_u32 s44, s54, s52")
    E("v_mov_b32 v24, s44")
    E("v_mov_b32 v25, s49")
    E("v_mov_b32 v26, s50")
    E("v_mov_b32 v27, s51")
    E("global_store_dwordx4 v21, v[24:27], s[40:41]")
E("s_branch L_END")
for sm4 in range(4):
    emit_rare(sm4 % 2, sm4)
E("L_END:")

txt = HEADER.format(grid=256, block=256, lds=LDS_BYTES) + "\n".join(out) + "\n" + FOOTER.format(vgpr=512, sgpr=102, accum=256)
open(sys.argv[1] if len(sys.argv) > 1 else "standalone__gqa_softmax__prompt.s", "w").write(txt)
```

```python
import sys, os
from common import *
STAMP = os.environ.get("STAMP") == "1"
X_NOBAR = os.environ.get("X_NOBAR") == "1"
X_NODMA = os.environ.get("X_NODMA") == "1"
X_NOCHECK = os.environ.get("X_NOCHECK") == "1"
X_NOW = os.environ.get("X_NOW") == "1"
X_NOSM = os.environ.get("X_NOSM") == "1"
X_PAD = int(os.environ.get("X_PAD", "0"))

R = 4
KRING = 0
VRING = R * 8192
LDS_BYTES = 2 * R * 8192
THETA = 16384.0

out = []
def E(s): out.append(s)

vLane = 1
def vKaddr(t): return 2 + t
def vVaddr(db): return 10 + db
vKdma = [14, 15]
vVdma = 16
vL = [17, 18]
vU = [19, 20]
T0, T1, T2 = 21, 22, 23
TMP = list(range(24, 32))
def S(p, qb, r=0): return 32 + p * 32 + qb * 16 + r
def P(p, qb, r=0): return 96 + p * 16 + qb * 8 + r
def NM(qb, r=0): return 128 + qb * 16 + r
def KF(t): return 160 + 4 * t
def VF(f): return 192 + 4 * f
QST = 192
def aO(qb, db): return qb * 64 + db * 16
def aQ(qb, t): return 128 + qb * 32 + t * 4
def vr(b, n): return f"v[{b}:{b+n-1}]"
def ar(b, n): return f"a[{b}:{b+n-1}]"

sKoff, sVoff, sWoff, sCnt, sThr = 28, 29, 30, 31, 32

def kread_gap(t): return 4 * t - 5
def vread_gap(f, j): return 4 * f - 4 + j
BAR_GAP = 26

def ds_events(slot):
    ev = []
    for t in range(8):
        g = kread_gap(t)
        if g >= 0: ev.append((g, 'K', t, slot + 1))
        else: ev.append((g + 32, 'K', t, slot + 2))
    for f in range(8):
        for j in range(2):
            g = vread_gap(f, j)
            if g >= 0: ev.append((g, 'V', (f, j), slot - 1))
            else: ev.append((g + 32, 'V', (f, j), slot))
    ev.sort(key=lambda e: e[0])
    return ev

def wait_count(slot, pos, need):
    seq = []
    for s in range(slot - 2, slot + 1):
        for (g, k, i, u) in ds_events(s):
            seq.append((32 * s + g, k, i, u))
    seq.sort(key=lambda e: e[0])
    limit = 32 * slot + pos - 1
    seq = [e for e in seq if e[0] <= limit]
    idx = [n for n, e in enumerate(seq) if (e[1], e[2], e[3]) == need]
    assert len(idx) == 1, (slot, pos, need)
    return len(seq) - 1 - idx[0]

NEXP_GAPS = 29
DMA_COST = 16
def exp_gap(k): return k * NEXP_GAPS // 32

def emit_slot(sm4, label_id):
    s = sm4 + 64
    p = s % 2
    gaps = [dict(early=[], valu=[], late=[]) for _ in range(32)]
    for (g, k, i, u) in ds_events(s):
        if k == 'K':
            gaps[g]['early'].append(f"ds_read_b128 {vr(KF(i),4)}, v{vKaddr(i)} offset:{KRING + (u % R) * 8192}")
        else:
            f, j = i
            ks, db = f // 4, f % 4
            gaps[g]['early'].append(f"ds_read_b64_tr_b16 {vr(VF(f)+2*j,2)}, v{vVaddr(db)} offset:{VRING + (u % R) * 8192 + (16*ks+8*j)*256}")
    for t in range(8):
        pos = 4 * t
        n = wait_count(s, pos, ('K', t, s + 1))
        gaps[(pos - 1) % 32]['late'].append(('W', pos, f"s_waitcnt lgkmcnt({n})"))
    for f in range(8):
        pos = 4 * f + 2
        n = wait_count(s, pos, ('V', (f, 1), s - 1))
        gaps[pos - 1]['late'].append(('W', pos, f"s_waitcnt lgkmcnt({n})"))
    kent = (s + 4) % R
    vent = (s + 1) % R
    gaps[2]['early'].append(f"buffer_load_dwordx4 v{vKdma[1]}, s[16:19], s{sKoff} offen offset:1024 lds")
    gaps[3]['late'].append(('S', 0, f"s_add_u32 s{sKoff}, s{sKoff}, 8192"))
    gaps[5]['late'].append(('S', 0, f"s_add_u32 m0, s{sWoff}, {VRING + vent * 8192}"))
    gaps[6]['early'].append(f"buffer_load_dwordx4 v{vVdma}, s[20:23], s{sVoff} offen lds")
    gaps[10]['early'].append(f"buffer_load_dwordx4 v{vVdma}, s[20:23], s{sVoff} offen offset:1024 lds")
    gaps[11]['late'].append(('S', 0, f"s_add_u32 s{sVoff}, s{sVoff}, 8192"))
    gaps[29]['late'].append(('S', 0, f"s_add_u32 m0, s{sWoff}, {KRING + kent * 8192}"))
    gaps[30]['early'].append(f"buffer_load_dwordx4 v{vKdma[0]}, s[16:19], s{sKoff} offen lds")
    if not X_NOBAR:
        gaps[BAR_GAP]['late'].append(('B', 0, "s_waitcnt vmcnt(4)"))
        gaps[BAR_GAP]['late'].append(('B', 1, "s_barrier"))
    if X_NODMA:
        for gg in gaps:
            gg['early'] = [x for x in gg['early'] if not x.startswith('buffer_load')]
    if X_NOW:
        for gg in gaps:
            gg['late'] = [x for x in gg['late'] if x[0] != 'W']
    cap = []
    for g in range(32):
        c = 24
        for x in gaps[g]['early']:
            c -= 4 if x.startswith('ds_') else DMA_COST
        c -= 4 * len(gaps[g]['late'])
        if g == 31: c -= 24
        cap.append(c)
    exps = list(range(32))
    adds = []
    cvts = []
    tmp_free_at = {}
    tmp_of = {}
    done_exp_gap = {}
    ei = 0
    pend_small = []
    for g in range(32):
        c = cap[g]
        progress = True
        while progress:
            progress = False
            for item in list(pend_small):
                if item[0] <= g and c >= 4:
                    gaps[g]['valu'].append(item[1]); c -= 4
                    for tr in item[2]: tmp_free_at[tr] = tmp_free_at.get(tr, 0) - 1
                    pend_small.remove(item); progress = True
                    break
        while ei < 32 and c >= 8:
            k = ei
            tr = TMP[k % len(TMP)]
            if tmp_free_at.get(tr, 0) > 0: break
            job = k // 2; e = k % 2
            j = job // 2; qb = job % 2
            gaps[g]['valu'].append(f"v_exp_f32 v{tr}, v{S(p, qb, 2*j+e)}")
            c -= 8
            tmp_of[k] = tr
            if e == 1:
                t0 = tmp_of[k - 1]
                tmp_free_at[t0] = 2; tmp_free_at[tr] = 2
                if j == 0:
                    pend_small.append((g + 1, f"v_add_f32 v{vU[qb]}, v{t0}, v{tr}", (t0, tr)))
                else:
                    pend_small.append((g + 1, f"v_add_f32 v{vU[qb]}, v{vU[qb]}, v{t0}", (t0,)))
                    pend_small.append((g + 1, f"v_add_f32 v{vU[qb]}, v{vU[qb]}, v{tr}", (tr,)))
                pend_small.append((g + 1, f"v_cvt_pk_bf16_f32 v{P(p, qb, j)}, v{t0}, v{tr}", (t0, tr)))
            ei += 1
    assert ei == 32 and not pend_small, ("VALU did not fit", ei, pend_small)
    for g in range(32):
        if g % 4 < 2:
            t = g // 4; qb = g % 4
            c = vr(NM(qb), 16) if t == 0 else vr(S(1 - p, qb), 16)
            E(f"v_mfma_f32_32x32x16_bf16 {vr(S(1-p,qb),16)}, {vr(KF(t),4)}, {ar(aQ(qb,t),4)}, {c}")
        else:
            f = g // 4; qb = g % 4 - 2
            ks, db = f // 4, f % 4
            E(f"v_mfma_f32_32x32x16_bf16 {ar(aO(qb,db),16)}, {vr(VF(f),4)}, {vr(P(1-p,qb,4*ks),4)}, {ar(aO(qb,db),16)}")
        for x in gaps[g]['early']: E(x)
        for x in gaps[g]['valu']:
            if not X_NOSM: E(x)
        late = gaps[g]['late']
        for _ in range(X_PAD): E("s_nop 0")
        for x in sorted(late, key=lambda z: {'S': 0, 'B': 1, 'W': 2}[z[0]] * 10 + z[1] if z[0] != 'W' else 20):
            E(x[2])
    if not X_NOCHECK:
        E(f"v_max_f32 v{T0}, v{vU[0]}, v{vU[1]}")
        E(f"v_cmp_lt_f32 vcc, s{sThr}, v{T0}")
        E(f"s_cbranch_vccnz L_RARE_{label_id}")
    E(f"L_BACK_{label_id}:")
    E(f"v_add_f32 v{vL[0]}, v{vL[0]}, v{vU[0]}")
    E(f"v_add_f32 v{vL[1]}, v{vL[1]}, v{vU[1]}")

def emit_maxes(p, qb, dst):
    E(f"v_max3_f32 v{dst}, v{S(p,qb,0)}, v{S(p,qb,1)}, v{S(p,qb,2)}")
    for r in range(3, 15, 2):
        E(f"v_max3_f32 v{dst}, v{dst}, v{S(p,qb,r)}, v{S(p,qb,r+1)}")
    E(f"v_max_f32 v{dst}, v{dst}, v{S(p,qb,15)}")
    E(f"v_mov_b32 v{T2}, v{dst}")
    E("s_nop 1")
    E(f"v_permlane32_swap_b32 v{dst}, v{T2}")
    E("s_nop 1")
    E(f"v_max_f32 v{dst}, v{dst}, v{T2}")

def emit_softmax_plain(p):
    for qb in range(2):
        for j in range(8):
            a, b = TMP[0], TMP[1]
            E(f"v_exp_f32 v{a}, v{S(p,qb,2*j)}")
            E(f"v_exp_f32 v{b}, v{S(p,qb,2*j+1)}")
            E("s_nop 0")
            if j == 0:
                E(f"v_add_f32 v{vU[qb]}, v{a}, v{b}")
            else:
                E(f"v_add_f32 v{vU[qb]}, v{vU[qb]}, v{a}")
                E(f"v_add_f32 v{vU[qb]}, v{vU[qb]}, v{b}")
            E(f"v_cvt_pk_bf16_f32 v{P(p,qb,j)}, v{a}, v{b}")

def emit_rare(p, label_id):
    E(f"L_RARE_{label_id}:")
    E("s_nop 15")
    E("s_nop 15")
    dl = TMP[2]; al = TMP[3]
    for qb in range(2):
        emit_maxes(p, qb, dl)
        E(f"v_max_f32 v{dl}, 0, v{dl}")
        E(f"v_exp_f32_e64 v{al}, -v{dl}")
        for r in range(16):
            E(f"v_sub_f32 v{NM(qb,r)}, v{NM(qb,r)}, v{dl}")
        for r in range(16):
            E(f"v_sub_f32 v{S(p,qb,r)}, v{S(p,qb,r)}, v{dl}")
            E(f"v_sub_f32 v{S(1-p,qb,r)}, v{S(1-p,qb,r)}, v{dl}")
        E(f"v_mul_f32 v{vL[qb]}, v{vL[qb]}, v{al}")
        for db in range(4):
            for r in range(16):
                a = aO(qb, db) + r
                E(f"v_accvgpr_read_b32 v{TMP[4]}, a{a}")
                E("s_nop 0")
                E(f"v_mul_f32 v{TMP[4]}, v{TMP[4]}, v{al}")
                E(f"v_accvgpr_write_b32 a{a}, v{TMP[4]}")
    emit_softmax_plain(p)
    E("s_nop 4")
    E(f"s_branch L_BACK_{label_id}")

def stamp(i):
    if not STAMP: return
    E(f"s_memtime s[40:41]")
    E("s_waitcnt lgkmcnt(0)")
    E(f"s_mov_b32 s{44+i}, s40")
if STAMP:
    stamp(0)
    E("s_memrealtime s[52:53]")
    E("s_waitcnt lgkmcnt(0)")
E("s_cmp_ge_u32 s2, 256")
E("s_cbranch_scc1 L_END")
E("s_load_dwordx4 s[4:7], s[0:1], 0")
E("s_load_dwordx4 s[8:11], s[0:1], 16")
E("s_and_b32 s12, s2, 7")
E("s_lshr_b32 s13, s2, 3")
E("s_and_b32 s33, s13, 3")
E("s_lshl_b32 s12, s12, 2")
E("s_or_b32 s12, s12, s33")
E("s_lshr_b32 s13, s13, 2")
E("v_lshrrev_b32 v27, 6, v0")
E("v_and_b32 v1, 63, v0")
E("v_readfirstlane_b32 s14, v27")
E("s_waitcnt lgkmcnt(0)")
E("s_mul_i32 s33, s12, 0x80000")
E("s_add_u32 s16, s6, s33")
E("s_addc_u32 s17, s7, 0")
E("s_mov_b32 s18, 0x80000")
E("s_mov_b32 s19, 0x00020000")
E("s_add_u32 s20, s8, s33")
E("s_addc_u32 s21, s9, 0")
E("s_mov_b32 s22, 0x80000")
E("s_mov_b32 s23, 0x00020000")
E("v_lshrrev_b32 v21, 4, v1")
E("v_and_b32 v22, 15, v1")
E("v_lshl_add_u32 v24, v27, 3, v21")
for i in range(2):
    E(f"v_add_u32 v25, {4*i}, v24")
    E("v_and_b32 v26, 15, v25")
    E("v_xor_b32 v26, v26, v22")
    E("v_lshlrev_b32 v26, 4, v26")
    E("v_lshl_add_u32 v26, v25, 8, v26")
    E(f"v_subrev_u32 v{vKdma[i]}, {1024*i}, v26")
E("v_lshlrev_b32 v25, 2, v21")
E("v_xor_b32 v25, v25, v22")
E("v_lshlrev_b32 v25, 4, v25")
E(f"v_lshl_add_u32 v{vVdma}, v24, 8, v25")
E(f"s_lshl_b32 s{sWoff}, s14, 11")
E(f"s_mov_b32 s{sKoff}, 0")
E(f"s_mov_b32 s{sVoff}, 0")
for u in range(3):
    E(f"s_add_u32 m0, s{sWoff}, {KRING + u * 8192}")
    E("s_nop 0")
    E(f"buffer_load_dwordx4 v{vKdma[0]}, s[16:19], s{sKoff} offen lds")
    E(f"buffer_load_dwordx4 v{vKdma[1]}, s[16:19], s{sKoff} offen offset:1024 lds")
    E(f"s_add_u32 s{sKoff}, s{sKoff}, 8192")
E(f"s_add_u32 m0, s{sWoff}, {VRING}")
E("s_nop 0")
E(f"buffer_load_dwordx4 v{vVdma}, s[20:23], s{sVoff} offen lds")
E(f"buffer_load_dwordx4 v{vVdma}, s[20:23], s{sVoff} offen offset:1024 lds")
E(f"s_add_u32 s{sVoff}, s{sVoff}, 8192")
E("s_lshl_b32 s34, s12, 11")
E("s_lshl_b32 s35, s13, 8")
E("s_add_u32 s34, s34, s35")
E("s_lshl_b32 s35, s14, 6")
E("s_add_u32 s34, s34, s35")
E("s_lshl_b32 s34, s34, 8")
E("s_add_u32 s24, s4, s34")
E("s_addc_u32 s25, s5, 0")
E("s_mov_b32 s26, 16384")
E("s_mov_b32 s27, 0x00020000")
E("s_mov_b32 s36, 8192")
E("v_and_b32 v21, 31, v1")
E("v_lshrrev_b32 v22, 5, v1")
E("v_lshlrev_b32 v23, 8, v21")
E("v_lshl_add_u32 v23, v22, 4, v23")
for qb in range(2):
    for t in range(8):
        so = "0" if qb == 0 else "s36"
        E(f"buffer_load_dwordx4 {vr(QST + qb*32 + t*4, 4)}, v23, s[24:27], {so} offen offset:{32*t}")
E("v_and_b32 v24, 15, v21")
for t in range(8):
    E(f"v_add_u32 v25, {2*t}, v22")
    E("v_xor_b32 v25, v25, v24")
    E("v_lshlrev_b32 v25, 4, v25")
    E(f"v_lshl_add_u32 v{vKaddr(t)}, v21, 8, v25")
E("v_lshrrev_b32 v21, 4, v1")
E("v_bfe_u32 v22, v1, 2, 2")
E("v_and_b32 v24, 3, v1")
E("v_lshrrev_b32 v25, 1, v21")
E("v_lshl_add_u32 v25, v25, 2, v22")
E("v_lshlrev_b32 v25, 8, v25")
E("v_and_b32 v26, 1, v21")
E("v_lshl_add_u32 v25, v26, 5, v25")
E("v_lshl_add_u32 v25, v24, 3, v25")
for db in range(4):
    E(f"v_xor_b32 v26, {db}, v22")
    E(f"v_lshl_add_u32 v{vVaddr(db)}, v26, 6, v25")
E("v_mov_b32 v24, 0")
E("v_mov_b32 v25, 0")
E("v_mov_b32 v26, 0")
E("v_mov_b32 v27, 0")
E("v_lshlrev_b32 v21, 4, v0")
E(f"ds_write_b128 v21, v[24:27] offset:{VRING + (R-1)*8192}")
E(f"ds_write_b128 v21, v[24:27] offset:{VRING + (R-1)*8192 + 4096}")
for i in range(128):
    E(f"v_accvgpr_write_b32 a{i}, 0")
for i in range(16):
    E(f"v_mov_b32 v{P(1,0,i)}, 0")
E(f"v_mov_b32 v{vL[0]}, 0")
E(f"v_mov_b32 v{vL[1]}, 0")
E(f"s_mov_b32 s{sThr}, {f32hex(THETA)}")
E(f"s_mov_b32 s34, {f32hex(C_SCALE)}")
E("s_waitcnt vmcnt(0)")
for i in range(64):
    r = QST + i
    E(f"v_lshlrev_b32 v21, 16, v{r}")
    E(f"v_and_b32 v22, 0xffff0000, v{r}")
    E("v_mul_f32 v21, s34, v21")
    E("v_mul_f32 v22, s34, v22")
    E("v_cvt_pk_bf16_f32 v23, v21, v22")
    E(f"v_accvgpr_write_b32 a{128+i}, v23")
E("s_waitcnt lgkmcnt(0)")
E("s_barrier")
for t in range(8):
    E(f"ds_read_b128 {vr(KF(t),4)}, v{vKaddr(t)} offset:{KRING}")
E("s_waitcnt lgkmcnt(0)")
for t in range(8):
    for qb in range(2):
        c = "0" if t == 0 else vr(S(0, qb), 16)
        E(f"v_mfma_f32_32x32x16_bf16 {vr(S(0,qb),16)}, {vr(KF(t),4)}, {ar(aQ(qb,t),4)}, {c}")
E(f"s_add_u32 m0, s{sWoff}, {KRING + 3 * 8192}")
E(f"ds_read_b128 {vr(KF(0),4)}, v{vKaddr(0)} offset:{KRING + 8192}")
E(f"ds_read_b128 {vr(KF(1),4)}, v{vKaddr(1)} offset:{KRING + 8192}")
for j in range(2):
    E(f"ds_read_b64_tr_b16 {vr(VF(0)+2*j,2)}, v{vVaddr(0)} offset:{VRING + (R-1) * 8192 + 8*j*256}")
E(f"buffer_load_dwordx4 v{vKdma[0]}, s[16:19], s{sKoff} offen lds")
E("s_nop 15")
E("s_nop 15")
for qb in range(2):
    emit_maxes(0, qb, T0)
    for r in range(16):
        E(f"v_sub_f32 v{NM(qb,r)}, 0, v{T0}")
        E(f"v_sub_f32 v{S(0,qb,r)}, v{S(0,qb,r)}, v{T0}")
E("s_waitcnt lgkmcnt(0)")
E(f"s_mov_b32 s{sCnt}, 16")
E("s_nop 1")
stamp(1)
E("L_LOOP:")
for sm4 in range(4):
    emit_slot(sm4, sm4)
E(f"s_sub_u32 s{sCnt}, s{sCnt}, 1")
E(f"s_cmp_lg_u32 s{sCnt}, 0")
E("s_cbranch_scc1 L_LOOP")
stamp(2)
for f in range(1, 8):
    ks, db = f // 4, f % 4
    for j in range(2):
        E(f"ds_read_b64_tr_b16 {vr(VF(f)+2*j,2)}, v{vVaddr(db)} offset:{VRING + 3 * 8192 + (16*ks+8*j)*256}")
E("s_waitcnt lgkmcnt(0)")
for f in range(8):
    ks, db = f // 4, f % 4
    for qb in range(2):
        E(f"v_mfma_f32_32x32x16_bf16 {ar(aO(qb,db),16)}, {vr(VF(f),4)}, {vr(P(1,qb,4*ks),4)}, {ar(aO(qb,db),16)}")
E("s_lshl_b32 s34, s12, 11")
E("s_lshl_b32 s35, s13, 8")
E("s_add_u32 s34, s34, s35")
E("s_lshl_b32 s35, s14, 6")
E("s_add_u32 s34, s34, s35")
E("s_lshl_b32 s34, s34, 8")
E("s_add_u32 s24, s10, s34")
E("s_addc_u32 s25, s11, 0")
E("s_mov_b32 s26, 16384")
E("s_mov_b32 s27, 0x00020000")
E("v_and_b32 v21, 31, v1")
E("v_lshrrev_b32 v22, 5, v1")
E("v_lshlrev_b32 v23, 8, v21")
E("v_lshl_add_u32 v23, v22, 4, v23")
E("s_nop 15")
E("s_nop 15")
for qb in range(2):
    E(f"v_mov_b32 v21, v{vL[qb]}")
    E("s_nop 1")
    E(f"v_permlane32_swap_b32 v{vL[qb]}, v21")
    E("s_nop 1")
    E(f"v_add_f32 v21, v{vL[qb]}, v21")
    E("v_rcp_f32 v21, v21")
    E("s_nop 1")
    so = "0" if qb == 0 else "s36"
    for gp in range(8):
        base = 32 + (gp % 4) * 8
        for k in range(8):
            g = 2 * gp + k // 4
            a = aO(qb, g // 4) + (g % 4) * 4 + (k % 4)
            E(f"v_accvgpr_read_b32 v{base+k}, a{a}")
        for k in range(8):
            E(f"v_mul_f32 v{base+k}, v{base+k}, v21")
        o = 64 + (gp % 4) * 4
        E(f"v_cvt_pk_bf16_f32 v{o}, v{base}, v{base+1}")
        E(f"v_cvt_pk_bf16_f32 v{o+1}, v{base+2}, v{base+3}")
        E(f"v_cvt_pk_bf16_f32 v{o+2}, v{base+4}, v{base+5}")
        E(f"v_cvt_pk_bf16_f32 v{o+3}, v{base+6}, v{base+7}")
        E("s_nop 1")
        E(f"v_permlane32_swap_b32 v{o}, v{o+2}")
        E(f"v_permlane32_swap_b32 v{o+1}, v{o+3}")
        E(f"buffer_store_dwordx4 v[{o}:{o+3}], v23, s[24:27], {so} offen offset:{32*gp}")
if STAMP:
    E("s_waitcnt vmcnt(0)")
    stamp(3)
    E("s_load_dwordx2 s[40:41], s[0:1], 40")
    E("s_waitcnt lgkmcnt(0)")
    E("v_lshrrev_b32 v21, 6, v0")
    E("s_lshl_b32 s42, s2, 2")
    E("v_add_u32 v21, s42, v21")
    E("v_lshlrev_b32 v21, 4, v21")
    for i in range(1, 4):
        E(f"s_sub_u32 s{48+i}, s{44+i}, s44")
    E("s_memrealtime s[54:55]")
    E("s_waitcnt lgkmcnt(0)")
    E("s_sub_u32 s44, s54, s52")
    E("v_mov_b32 v24, s44")
    E("v_mov_b32 v25, s49")
    E("v_mov_b32 v26, s50")
    E("v_mov_b32 v27, s51")
    E("global_store_dwordx4 v21, v[24:27], s[40:41]")
E("s_branch L_END")
for sm4 in range(4):
    emit_rare(sm4 % 2, sm4)
E("L_END:")

txt = HEADER.format(grid=256, block=256, lds=LDS_BYTES) + "\n".join(out) + "\n" + FOOTER.format(vgpr=512, sgpr=102, accum=256)
open(sys.argv[1] if len(sys.argv) > 1 else "standalone__gqa_softmax__prompt.s", "w").write(txt)
```
